```python
import torch

def _softmax(x, axis=-1):
    return torch.softmax(x, dim=axis)
def _gelu(x):
    return torch.nn.functional.gelu(x, approximate="tanh")
def _silu(x):
    return torch.nn.functional.silu(x)
def _sigmoid(x):
    return torch.sigmoid(x)
def _layernorm(x, axis=-1, eps=1e-5):
    m = x.mean(dim=axis, keepdim=True)
    v = x.var(dim=axis, keepdim=True, unbiased=False)
    return (x - m) / torch.sqrt(v + eps)
def _scatter_add(tgt, idx, src, axis=0):
    return tgt.clone().index_add_(axis, idx, src)
def _segment_sum(src, seg, n):
    out = torch.zeros((n,) + src.shape[1:], dtype=src.dtype)
    return out.index_add_(0, seg, src)
def _pad(x, pw):
    flat = tuple(v for pair in reversed(pw) for v in pair)
    return torch.nn.functional.pad(x, flat)

kernel_name = 'gated_mix__sliding_local_dilated__dense_activation_gelu__prompt'

def setup_inputs():

    _w = (lambda a: (lambda t: t.to(torch.bfloat16) if t.is_floating_point() else t)(torch.as_tensor(a)))
    def _A_setup():
        B, S, D = 1, 2048, 640
        return {
            "x": _w((lambda *s: torch.randn(*s, dtype=torch.bfloat16) * 0.2)(B, S, D)),
            "wqkv": _w((lambda *s: torch.randn(*s, dtype=torch.bfloat16) * 0.2)(D, 3 * D)),
            "wo": _w((lambda *s: torch.randn(*s, dtype=torch.bfloat16) * 0.2)(D, D)),
        }
    _A_in = _A_setup()

    def _B_setup():
        B, S, D, F = 1, 2048, 640, 1728
        return {
            "x": _w((lambda *s: torch.randn(*s, dtype=torch.bfloat16) * 0.2)(B, S, D)),
            "w1": _w((lambda *s: torch.randn(*s, dtype=torch.bfloat16) * 3.2)(D, F) * (D ** -0.5)),
            "b1": _w((lambda *s: torch.randn(*s, dtype=torch.bfloat16) * 3.2)(F) * 0.01),
            "w2": _w((lambda *s: torch.randn(*s, dtype=torch.bfloat16) * 3.2)(F, D) * (F ** -0.5)),
            "b2": _w((lambda *s: torch.randn(*s, dtype=torch.bfloat16) * 3.2)(D) * 0.01),
        }
    _B_in = _B_setup()

    return {
        "A_x": _A_in["x"],
        "A_wqkv": _A_in["wqkv"],
        "A_wo": _A_in["wo"],
        "B_x": _B_in["x"],
        "B_w1": _B_in["w1"],
        "B_b1": _B_in["b1"],
        "B_w2": _B_in["w2"],
        "B_b2": _B_in["b2"],
        "gate_w": _w((lambda *s: torch.randn(*s, dtype=torch.bfloat16) * 0.2)(640) * 16.0),
    }

def reference(A_x, A_wqkv, A_wo, B_x, B_w1, B_b1, B_w2, B_b2, gate_w):
    def _A_ref(x, wqkv, wo):
        B, S, D = x.shape
        H = 32; Dh = D // H
        W, dil = 8, 2
        qkv = (lambda x, *d: x.permute(*d))((x @ wqkv).reshape(B, S, 3, H, Dh), 2, 0, 3, 1, 4)
        q, k, v = qkv[0], qkv[1], qkv[2]
        scale = Dh ** -0.5
        pos = torch.arange(S)
        off = torch.arange(W) * dil
        idx = pos[:, None] - off[None, :]
        mask = idx >= 0
        idx_c = torch.where(mask, idx, 0).reshape(-1)
        kg = k[:, :, idx_c, :].reshape(B, H, S, W, Dh)
        vg = v[:, :, idx_c, :].reshape(B, H, S, W, Dh)
        logits = torch.einsum("bhsd,bhswd->bhsw", q, kg) * scale
        logits = torch.where(mask[None, None, :, :], logits, -1e9)
        attn = _softmax(logits, axis=-1)
        o = torch.einsum("bhsw,bhswd->bhsd", attn, vg)
        return (lambda x, *d: x.permute(*d))(o, 0, 2, 1, 3).reshape(B, S, D) @ wo

    def _B_ref(x, w1, b1, w2, b2):
        h = torch.einsum("bsd,df->bsf", x, w1) + b1
        h = _gelu(h)
        return torch.einsum("bsf,fd->bsd", h, w2) + b2

    x = A_x
    g = _sigmoid((x * gate_w).sum(-1, keepdims=True))
    a = _A_ref(x, A_wqkv, A_wo)
    b = _B_ref(x, B_w1, B_b1, B_w2, B_b2)
    return g * a + (1 - g) * b
```

```python
import re

def vr(b, n=1):
    return f"v{b}" if n == 1 else f"v[{b}:{b+n-1}]"
def ar(b, n=1):
    return f"a{b}" if n == 1 else f"a[{b}:{b+n-1}]"
def sr(b, n=1):
    return f"s{b}" if n == 1 else f"s[{b}:{b+n-1}]"

_REG = re.compile(r"^(-|abs\()?([vas])(\d+)\)?$|^(-)?([vas])\[(\d+):(\d+)\]$")

def regs_of(tok):
    tok = tok.strip()
    if tok in ("vcc",):
        return [("s", "vcc")]
    if tok == "exec":
        return [("s", "exec")]
    if tok == "m0":
        return [("s", "m0")]
    m = re.match(r"^-?\|?([vas])(\d+)\|?$", tok)
    if m:
        return [(m.group(1), int(m.group(2)))]
    m = re.match(r"^-?([vas])\[(\d+):(\d+)\]$", tok)
    if m:
        return [(m.group(1), i) for i in range(int(m.group(2)), int(m.group(3)) + 1)]
    return []

TRANS = ("v_exp_f32", "v_log_f32", "v_rcp_f32", "v_rsq_f32", "v_sqrt_f32", "v_sin_f32", "v_cos_f32")

class Ins:
    __slots__ = ("text", "op", "ops", "w", "r", "kind", "size")
    def __init__(self, text):
        self.text = text
        t = text.split(";")[0].strip()
        self.op = t.split()[0] if t else ""
        rest = t[len(self.op):].strip()
        toks = [x.strip() for x in rest.split(",")] if rest else []
        if toks:
            last = toks[-1].split()
            if last:
                toks[-1] = last[0]
        self.ops = toks
        self.w, self.r = [], []
        op = self.op
        self.kind = "other"
        R = lambda i: regs_of(toks[i]) if i < len(toks) else []
        if op.startswith("v_mfma"):
            self.kind = "mfma"
            self.w = R(0); self.r = R(1) + R(2) + R(3)
        elif op.startswith("v_permlane") and "swap" in op:
            self.kind = "permlane"
            self.w = R(0) + R(1); self.r = R(0) + R(1)
        elif op.startswith("v_cmp"):
            self.kind = "valu"
            self.w = R(0); self.r = R(1) + R(2)
        elif op.startswith("v_readfirstlane") or op.startswith("v_readlane"):
            self.kind = "readlane"
            self.w = R(0); self.r = R(1)
        elif op.startswith("v_cndmask"):
            self.kind = "valu"
            self.w = R(0); self.r = R(1) + R(2) + (R(3) if len(toks) > 3 else [("s", "vcc")])
        elif op.startswith("v_add_co") or op.startswith("v_addc_co") or op.startswith("v_sub_co"):
            self.kind = "valu"
            self.w = R(0) + R(1); self.r = sum([R(i) for i in range(2, len(toks))], [])
        elif op.startswith("v_"):
            self.kind = "trans" if any(op.startswith(x) for x in TRANS) else "valu"
            if "_dpp" in op or "row_" in text or "quad_perm" in text:
                self.kind = "dpp"
            self.w = R(0); self.r = sum([R(i) for i in range(1, len(toks))], [])
            if op.startswith("v_fmac") or op.startswith("v_dot2c") or op.startswith("v_pk_fmac") or self.kind == "dpp":
                self.r += R(0)
        elif op.startswith("ds_read") or op.startswith("ds_bpermute") or op.startswith("ds_swizzle"):
            self.kind = "ds"
            self.w = R(0); self.r = sum([R(i) for i in range(1, len(toks))], [])
        elif op.startswith("ds_write"):
            self.kind = "ds"
            self.r = sum([R(i) for i in range(len(toks))], [])
        elif op.startswith("buffer_load") or op.startswith("global_load"):
            self.kind = "vmem"
            if " lds" in t or "_lds_" in op:
                self.kind = "dma"
                self.r = sum([R(i) for i in range(len(toks))], []) + [("s", "m0")]
            else:
                self.w = R(0); self.r = sum([R(i) for i in range(1, len(toks))], [])
        elif op.startswith("buffer_store") or op.startswith("global_store") or op.startswith("buffer_atomic") or op.startswith("global_atomic"):
            self.kind = "store"
            self.r = sum([R(i) for i in range(len(toks))], [])
        elif op.startswith("s_"):
            self.kind = "salu"
            if op.startswith("s_cmp") or op.startswith("s_waitcnt") or op in ("s_barrier", "s_endpgm", "s_branch", "s_nop", "s_setprio", "s_sleep") or op.startswith("s_cbranch") or op.startswith("s_bitcmp"):
                self.r = sum([R(i) for i in range(len(toks))], [])
            else:
                self.w = R(0); self.r = sum([R(i) for i in range(1, len(toks))], [])
                if "saveexec" in op:
                    self.w += [("s", "exec")]
        m = re.search(r"offset:(\d+)", t)
        if m:
            lim = 65535 if op.startswith("ds_") else 4095
            assert int(m.group(1)) <= lim, "offset out of range: " + text
    def nstates(self):
        if self.op == "s_nop":
            return int(self.ops[0]) + 1
        return 1

def mfma_passes(op):
    return 8 if "32x32" in op else 4

class Prog:
    def __init__(self):
        self.items = []
    def __call__(self, text):
        for line in text.split("\n"):
            s = line.strip()
            if not s:
                continue
            if s.startswith(";") or s.endswith(":") or s.startswith("."):
                self.items.append(s)
            else:
                self.items.append(Ins(s))
    def extend(self, lines):
        for l in lines:
            self(l)
    def label(self, name):
        self.items.append(name + ":")

    def fix_hazards(self, verbose=False):
        out = []
        hist = []
        inserted = 0
        def need_for(cur, prev):
            n = 0
            pw = set(prev.w); cr = set(cur.r); cw = set(cur.w)
            pk, ck = prev.kind, cur.kind
            pv = {x for x in pw if x[0] in "va"}
            ps = {x for x in pw if x[0] == "s"}
            valu_like = ("valu", "trans", "dpp", "permlane", "readlane")
            if pk == "mfma":
                p = mfma_passes(prev.op)
                full = {4: 8, 8: 12}[p]
                if ck == "mfma":
                    toks = cur.ops
                    ab = set(regs_of(toks[1]) + regs_of(toks[2]))
                    c = set(regs_of(toks[3])) if len(toks) > 3 else set()
                    if ab & pv: n = max(n, full)
                    if c & pv:
                        if regs_of(toks[3]) == regs_of(prev.ops[0]) and mfma_passes(cur.op) == p:
                            pass
                        else:
                            n = max(n, {4: 6, 8: 10}[p])
                    d = set(regs_of(toks[0]))
                    if (d & pv) and not (c & pv):
                        n = max(n, full)
                elif ck in valu_like + ("ds", "vmem", "store", "dma"):
                    if (cr | cw) & pv: n = max(n, full)
                if ck in valu_like:
                    c = set(regs_of(prev.ops[3])) if len(prev.ops) > 3 else set()
                    if cw & c: n = max(n, {4: 3, 8: 7}[p])
            if pk in valu_like:
                if ck == "mfma" and (cr & pv): n = max(n, 2)
                if ck == "permlane" and (cr & pv): n = max(n, 2)
                if ck == "dpp" and (cr & pv): n = max(n, 2)
                if ck == "readlane" and (cr & pv): n = max(n, 1)
                if pk == "trans" and ck in valu_like + ("mfma",) and (cr & pv): n = max(n, 1 if ck != "mfma" else 2)
                if ps:
                    if ck in ("vmem", "store", "dma") and (cr & ps): n = max(n, 5)
                    if ck in valu_like and (cr & ps): n = max(n, 2)
                    if ck == "salu" and (cr & ps): n = max(n, 4)
                    if ("s", "exec") in ps and ck == "mfma": n = max(n, 4)
            if pk == "salu":
                if ("s", "m0") in pw and ck == "dma": n = max(n, 1)
            if pk == "store" and ("x4" in prev.op or "x3" in prev.op):
                data = set(regs_of(prev.ops[0])) if prev.op.startswith("buffer") else set(regs_of(prev.ops[1]))
                if ck in valu_like and (cw & data): n = max(n, 2)
                elif (cw & data): n = max(n, 1)
            return n
        for it in self.items:
            if isinstance(it, str):
                out.append(it)
                continue
            dist = 0
            need = 0
            for prev in reversed(hist):
                req = need_for(it, prev)
                if req > dist:
                    need = max(need, req - dist)
                dist += prev.nstates()
                if dist > 20:
                    break
            while need > 0:
                k = min(need, 16)
                nop = Ins(f"s_nop {k-1}")
                nop.text += "  ; hazard pad"
                out.append(nop); hist.append(nop)
                inserted += 1
                if verbose:
                    print("nop", k, "before", it.text)
                need -= k
            out.append(it); hist.append(it)
            if len(hist) > 40:
                hist = hist[-40:]
        self.items = out
        return inserted

    def text(self):
        o = []
        for it in self.items:
            if isinstance(it, str):
                o.append(it if (it.endswith(":") or it.startswith(".") or it.startswith(";")) else "    " + it)
            else:
                o.append("    " + it.text)
        return "\n".join(o) + "\n"

def interleave(main, fill, start=0, per=1):
    out = []
    fi = 0
    for i, m in enumerate(main):
        out.append(m)
        if i >= start:
            for _ in range(per):
                if fi < len(fill):
                    f = fill[fi]; fi += 1
                    if isinstance(f, (list, tuple)): out.extend(f)
                    else: out.append(f)
    while fi < len(fill):
        f = fill[fi]; fi += 1
        if isinstance(f, (list, tuple)): out.extend(f)
        else: out.append(f)
    return out


class Stamps:
    def __init__(self, p, on, sbase=64):
        self.p, self.on, self.sbase, self.n, self.names = p, on, sbase, 0, []
    def start(self):
        if self.on:
            self.p(f"s_memrealtime s[{self.sbase}:{self.sbase+1}]")
    def mark(self, name):
        if self.on:
            b = self.sbase + 4 + 2 * self.n
            assert b + 1 < 100
            self.p(f"s_memtime s[{b}:{b+1}]")
            self.names.append(name); self.n += 1
    def dump(self, srd, wid_sgpr, base, vtmp):
        if not self.on:
            return
        p = self.p
        p(f"s_memrealtime s[{self.sbase+2}:{self.sbase+3}]")
        p("s_waitcnt lgkmcnt(0)")
        p(f"s_lshl_b32 s100, s2, 2")
        p(f"s_add_u32 s100, s100, s{wid_sgpr}")
        p(f"s_lshl_b32 s100, s100, 7")
        p(f"s_add_u32 s100, s100, {base}")
        p(f"v_mov_b32 v{vtmp}, 0")
        p("s_mov_b64 exec, 1")
        for i in range(2 + self.n):
            b = self.sbase + 2 * i
            p(f"v_mov_b32 v{vtmp+2}, s{b}")
            p(f"v_mov_b32 v{vtmp+3}, s{b+1}")
            p(f"buffer_store_dwordx2 v[{vtmp+2}:{vtmp+3}], v{vtmp}, s[{srd}:{srd+3}], s100 offen offset:{8*i}")
            p("s_nop 1")
        p("s_mov_b64 exec, -1")
```

```python
from asmlib import *
from gen_k2 import WS_A, WS_W, WS_G, WS_SIZE, WS_STAMP, NKS
import struct

def f2u(x):
    return struct.unpack("<I", struct.pack("<f", x))[0]

SLOT = 49152
XOFF, WOFF = 0, 16384
MISC = 3 * SLOT
LDS_BYTES = MISC + 16384
NEG = f2u(-1e30)

def k1(cfg):
    p = Prog()
    name = cfg["k1_name"]
    stf = cfg.get("st_flags", "")
    sW, sWM, sWN, sTY, sB, sC = 20, 21, 22, 23, 24, 25
    sXo, sWo, sSlot, sDelta, sCnt = 26, 27, 28, 29, 50
    sT0, sT1, sT2, sT3 = 48, 49, 51, 58
    sR0, sSt0, sSt1 = 59, 60, 61
    sCC = 62
    vLane = 1
    vXd = [2, 3, 4, 5]
    vWd = [6 + i for i in range(8)]
    vXr = [14, 15]
    vWr = [16, 17, 18, 19]
    vT = 20
    vPF = 126
    ACC = 128
    acc = lambda rt, nt: ACC + (rt * 8 + nt) * 4
    FB = [0, 48]
    KOP = lambda t: 2 + 6 * (t + 1)
    VA = lambda t: 32 + 2 * (t + 1)
    VB = lambda t: 42 + 2 * (t + 1)
    VX = lambda t: 52 + 2 * (t + 1)
    QOP = lambda t: 62 + 8 * t
    BC, BP, BP0 = 94, 98, 102
    vAddr = lambda t: 108 + t
    vAddrX = lambda t: 112 + t
    vHx = 116
    vOnes = 118
    vE = 120
    vBias = 64
    st = Stamps(p, cfg.get("stamp", False))

    p(f".p2align 8\n.globl {name}\n.type {name},@function\n{name}:")
    p(f"""
    s_cmp_ge_u32 s2, 256
    s_cbranch_scc1 K1_END
    """)
    st.start()
    st.mark("entry")
    p(f"""
    s_load_dwordx2 s[4:5], s[0:1], 0
    s_load_dwordx4 s[32:35], s[0:1], 8
    s_load_dwordx4 s[36:39], s[0:1], 32
    s_load_dwordx2 s[52:53], s[0:1], 48
    s_load_dwordx2 s[16:17], s[0:1], 64
    s_load_dwordx2 s[12:13], s[0:1], 88
    v_and_b32 v{vLane}, 63, v0
    """)
    if cfg.get("codepf", True):
        p(f"""
        s_getpc_b64 s[30:31]
        K1_PC:
        v_lshlrev_b32 v{vT}, 7, v{vLane}
        """)
        for j in range(cfg.get("k1_pf", 3)):
            p(f"""
            v_min_u32 v{vT+1}, K1_CODE_END-K1_PC-64, v{vT}
            global_load_dword v{vPF}, v{vT+1}, s[30:31]
            v_add_u32 v{vT}, 0x2000, v{vT}
            """)
    p(f"""
    v_lshrrev_b32 v{vT}, 6, v0
    s_and_b32 s{sT0}, s2, 7
    v_readfirstlane_b32 s{sW}, v{vT}
    s_lshr_b32 s{sT1}, s2, 3                  ; j
    s_and_b32 s{sT2}, s{sT0}, 1               ; gamma
    s_lshr_b32 s{sT0}, s{sT0}, 1              ; beta
    s_lshr_b32 s{sWM}, s{sW}, 1
    s_and_b32 s{sWN}, s{sW}, 1
    s_cmp_ge_u32 s{sT1}, 18
    s_cbranch_scc1 K1_HIDX
    s_mov_b32 s{sTY}, 0
    s_mul_i32 s{sT0}, s{sT0}, 18
    s_add_u32 s{sT0}, s{sT0}, s{sT1}          ; t = 18 beta + j
    s_lshr_b32 s{sB}, s{sT0}, 2               ; b
    s_and_b32 s{sT0}, s{sT0}, 3
    s_lshl_b32 s{sT2}, s{sT2}, 2
    s_add_u32 s{sC}, s{sT2}, s{sT0}           ; hg
    s_mul_i32 s{sR0}, s{sB}, 114
    s_branch K1_IDXD
    K1_HIDX:
    s_mov_b32 s{sTY}, 1
    s_sub_u32 s{sT1}, s{sT1}, 18
    s_mul_i32 s{sT2}, s{sT2}, 14
    s_add_u32 s{sT1}, s{sT1}, s{sT2}          ; tau
    s_lshr_b32 s{sC}, s{sT1}, 2               ; cb
    s_and_b32 s{sT1}, s{sT1}, 3
    s_lshl_b32 s{sT0}, s{sT0}, 2
    s_add_u32 s{sB}, s{sT0}, s{sT1}           ; rb
    s_lshl_b32 s{sR0}, s{sB}, 7
    K1_IDXD:
    """)
    t0, t1, t2, t3, t4, t5 = [vT + i for i in range(6)]
    p(f"""
    v_lshrrev_b32 v{t0}, 3, v{vLane}          ; l/8
    v_and_b32 v{t1}, 7, v{vLane}              ; slot
    v_lshrrev_b32 v{t2}, 4, v{vLane}          ; l/16
    s_lshl_b32 s{sT0}, s{sW}, 5
    v_add_u32 v{t3}, s{sT0}, v{t0}            ; 32w + l/8
    v_mul_u32_u24 v{t3}, 1280, v{t3}
    v_xor_b32 v{t4}, v{t1}, v{t2}             ; even i
    v_xor_b32 v{t5}, 4, v{t4}                 ; odd i
    v_lshl_add_u32 v{t4}, v{t4}, 4, v{t3}
    v_lshl_add_u32 v{t5}, v{t5}, 4, v{t3}
    """)
    for i in range(4):
        src = t4 if i % 2 == 0 else t5
        p(f"v_add_u32 v{vXd[i]}, {i * (8 * 1280 - 1024)}, v{src}")
    p(f"""
    v_and_b32 v{t0}, 15, v{vLane}             ; i16
    v_lshrrev_b32 v{t1}, 4, v{vLane}          ; q
    v_lshrrev_b32 v{t2}, 1, v{t0}
    v_xor_b32 v{t2}, v{t1}, v{t2}
    s_lshl_b32 s{sT0}, s{sWM}, 13
    v_lshl_add_u32 v{t3}, v{t0}, 7, s{sT0}
    v_lshl_add_u32 v{vXr[0]}, v{t2}, 4, v{t3}
    v_xor_b32 v{vXr[1]}, 64, v{vXr[0]}
    s_mul_i32 s{sXo}, s{sR0}, 1280
    s_mov_b32 s{sWo}, 0
    s_cmp_eq_u32 s{sTY}, 1
    s_cbranch_scc1 K1_HSET
    """)
    p(f"""
    s_mov_b32 s{sT0}, 2185
    v_mul_u32_u24 v{t0}, s{sT0}, v{vLane}
    v_lshrrev_b32 v{t0}, 16, v{t0}            ; d = l/30
    v_mul_u32_u24 v{t1}, 30, v{t0}
    v_sub_u32 v{t1}, v{vLane}, v{t1}          ; unit
    s_mov_b32 s{sT0}, 6554
    v_mul_u32_u24 v{t2}, s{sT0}, v{t1}
    v_lshrrev_b32 v{t2}, 16, v{t2}            ; seg
    v_mul_u32_u24 v{t3}, 10, v{t2}
    v_sub_u32 v{t3}, v{t1}, v{t3}             ; within
    v_mul_u32_u24 v{t2}, 1280, v{t2}
    v_lshl_add_u32 v{t2}, v{t3}, 4, v{t2}
    v_mul_u32_u24 v{t3}, 3840, v{t0}
    v_add_u32 v{t2}, v{t2}, v{t3}
    s_lshr_b32 s{sT0}, s{sW}, 1
    s_lshl_b32 s{sT0}, s{sT0}, 5
    s_and_b32 s{sT1}, s{sW}, 1
    s_lshl_b32 s{sT1}, s{sT1}, 2
    s_add_u32 s{sT0}, s{sT0}, s{sT1}          ; kw
    s_mul_i32 s{sT0}, s{sT0}, 3840
    s_mul_i32 s{sT1}, s{sC}, 160
    s_add_u32 s{sT0}, s{sT0}, s{sT1}
    v_add_u32 v{t2}, s{sT0}, v{t2}            ; base A
    v_cmp_le_u32 vcc, 60, v{vLane}
    v_mov_b32 v{t3}, 0
    v_mov_b32 v{t4}, {4*3840}
    v_cndmask_b32 v{t4}, v{t3}, v{t4}, vcc
    v_add_u32 v{t4}, v{t2}, v{t4}
    s_and_b32 s{sT1}, s{sW}, 1
    s_cmp_eq_u32 s{sT1}, 0
    s_cselect_b32 s{sT1}, {(-24*3840) & 0xffffffff}, 0
    v_mov_b32 v{t5}, s{sT1}
    v_cndmask_b32 v{t5}, v{t3}, v{t5}, vcc
    v_add_u32 v{t5}, v{t2}, v{t5}             ; base C (i == 7)
    """)
    for i in range(8):
        koff = 8 * (i // 2) + 2 * (i % 2)
        inst = (i % 5) * 960
        src = t5 if i == 7 else (t2 if i % 2 == 0 else t4)
        p(f"v_add_u32 v{vWd[i]}, {koff * 3840 - inst}, v{src}")
    p(f"""
    v_lshrrev_b32 v{t0}, 2, v{vLane}          ; 4q + r
    v_mul_u32_u24 v{t0}, 480, v{t0}
    s_mul_i32 s{sT0}, s{sWN}, 80
    s_add_u32 s{sT0}, s{sT0}, {WOFF}
    v_add_u32 v{t0}, s{sT0}, v{t0}
    v_and_b32 v{t1}, 3, v{vLane}              ; c
    v_lshl_add_u32 v{vWr[0]}, v{t1}, 3, v{t0}
    v_and_b32 v{t2}, 1, v{vLane}
    v_mul_u32_u24 v{t2}, 40, v{t2}
    v_add_u32 v{t2}, v{t2}, v{t0}             ; + 40*(c&1)
    v_lshrrev_b32 v{t3}, 1, v{t1}
    v_mul_u32_u24 v{t3}, 160, v{t3}
    v_add3_u32 v{vWr[1]}, v{t2}, v{t3}, 32
    v_add_u32 v{vWr[2]}, 352, v{t2}
    s_waitcnt lgkmcnt(0)
    s_mov_b32 s8, s32
    s_mov_b32 s9, s33
    s_mov_b32 s10, {640*3840}
    s_branch K1_SETD
    """)
    p.label("K1_HSET")
    p(f"""
    v_lshrrev_b32 v{t0}, 3, v{vLane}          ; r
    v_and_b32 v{t1}, 7, v{vLane}              ; u16
    v_lshrrev_b32 v{t2}, 1, v{t1}             ; slot32
    v_lshrrev_b32 v{t3}, 1, v{t0}
    v_and_b32 v{t3}, 3, v{t3}
    v_xor_b32 v{t2}, v{t2}, v{t3}             ; tt
    v_and_b32 v{t1}, 1, v{t1}
    v_lshlrev_b32 v{t1}, 4, v{t1}
    v_lshl_add_u32 v{t1}, v{t2}, 5, v{t1}
    v_lshrrev_b32 v{t2}, 2, v{t0}
    v_and_b32 v{t3}, 3, v{t0}
    v_lshl_add_u32 v{t2}, v{t2}, 3, v{t3}     ; 8(r/4) + r%4
    v_mul_u32_u24 v{t2}, 3456, v{t2}
    s_lshl_b32 s{sT0}, s{sC}, 9
    s_lshl_b32 s{sT1}, s{sW}, 7
    s_add_u32 s{sT0}, s{sT0}, s{sT1}
    v_add3_u32 v{t2}, v{t2}, v{t1}, s{sT0}
    """)
    for G in range(8):
        k = 32 * (G // 4) + 16 * (G % 2) + 4 * ((G // 2) % 2)
        p(f"v_add_u32 v{vWd[G]}, {k * 3456 - (G % 4) * 1024}, v{t2}")
    p(f"""
    v_lshrrev_b32 v{t0}, 5, v{vLane}          ; q/2
    v_lshrrev_b32 v{t1}, 2, v{vLane}
    v_and_b32 v{t1}, 7, v{t1}                 ; r = 4(q%2) + r'
    v_lshlrev_b32 v{t0}, 10, v{t0}
    v_lshl_add_u32 v{t0}, v{t1}, 7, v{t0}
    v_and_b32 v{t2}, 3, v{vLane}
    v_lshl_add_u32 v{t0}, v{t2}, 3, v{t0}
    s_lshl_b32 s{sT0}, s{sWN}, 14
    s_add_u32 s{sT0}, s{sT0}, {WOFF}
    v_add_u32 v{t0}, s{sT0}, v{t0}
    v_lshrrev_b32 v{t1}, 1, v{t1}             ; r>>1
    """)
    for tt in range(4):
        p(f"""
        v_xor_b32 v{t2}, {tt}, v{t1}
        v_lshl_add_u32 v{vWr[tt]}, v{t2}, 5, v{t0}
        """)
    p(f"""
    s_waitcnt lgkmcnt(0)
    s_mov_b32 s8, s36
    s_mov_b32 s9, s37
    s_mov_b32 s10, {640*3456}
    K1_SETD:
    s_mov_b32 s11, 0x20000
    s_mov_b32 s6, {2048*1280}
    s_mov_b32 s7, 0x20000
    s_mov_b32 s14, {WS_SIZE}
    s_mov_b32 s15, 0x20000
    s_mov_b32 s18, 1280
    s_mov_b32 s19, 0x20000
    s_mov_b32 s40, s38
    s_mov_b32 s41, s39
    s_mov_b32 s42, 3456
    s_mov_b32 s43, 0x20000
    """)

    def x_dma(i):
        off = f" offset:{1024*i}" if i else ""
        return f"buffer_load_dwordx4 v{vXd[i]}, s[4:7], s{sXo} offen{off} lds"
    def w_dma(ty, i):
        o = (i % 5) * 960 if ty == 0 else (i % 4) * 1024
        off = f" offset:{o}" if o else ""
        return f"buffer_load_dwordx4 v{vWd[i]}, s[8:11], s{sWo} offen{off} lds"
    def dma_list(ty, slot_expr):
        r = []
        r.append([f"s_lshl_b32 s{sT0}, s{sW}, 12", f"s_add_u32 m0, s{sT0}, {slot_expr}", x_dma(0)])
        for i in range(1, 4): r.append([x_dma(i)])
        wstep, split = (7680, 5) if ty == 0 else (8192, 4)
        r.append([f"s_mul_i32 s{sT0}, s{sW}, {wstep}", f"s_add_u32 s{sT0}, s{sT0}, {WOFF}", f"s_add_u32 m0, s{sT0}, {slot_expr}", "s_nop 0", w_dma(ty, 0)])
        for i in range(1, 8):
            if i == split:
                r.append([f"s_add_u32 m0, m0, {4800 if ty == 0 else 4096}", "s_nop 0", w_dma(ty, i)])
            else:
                r.append([w_dma(ty, i)])
        r[-1] = r[-1] + [f"s_add_u32 s{sXo}, s{sXo}, 128", f"s_add_u32 s{sWo}, s{sWo}, {64 * (3840 if ty == 0 else 3456)}"]
        return r

    def issue_stage(ty, slot):
        p(f"s_mov_b32 s{sSlot}, {slot * SLOT}")
        for it in dma_list(ty, f"s{sSlot}"):
            p.extend(it)

    def misc_loads(ty):
        p(f"""
        s_lshl_b32 s{sT0}, s2, 2
        s_add_u32 s{sT0}, s{sT0}, s{sW}
        s_cmp_ge_u32 s{sT0}, 740
        s_cbranch_scc1 K1_NORP{ty}
        s_mul_i32 s{sT1}, s{sT0}, 6554
        s_lshr_b32 s{sT1}, s{sT1}, 16             ; ks
        s_mul_i32 s{sT2}, s{sT1}, 10
        s_sub_u32 s{sT2}, s{sT0}, s{sT2}          ; cg
        s_mul_i32 s54, s{sT1}, 40960
        s_lshl_b32 s{sT3}, s{sT2}, 12
        s_add_u32 s54, s54, s{sT3}
        s_add_u32 s54, s54, {WS_W}
        v_lshrrev_b32 v{t0}, 3, v{vLane}          ; l/8
        v_lshrrev_b32 v{t1}, 5, v{vLane}
        v_mul_u32_u24 v{t1}, 20, v{t1}
        v_and_b32 v{t2}, 3, v{t0}
        v_add_u32 v{t1}, v{t1}, v{t2}
        s_cmp_ge_u32 s{sT1}, 70
        s_cselect_b64 vcc, -1, 0
        v_cndmask_b32 v{t0}, v{t0}, v{t1}, vcc
        v_mul_u32_u24 v{t0}, 1280, v{t0}
        v_and_b32 v{t1}, 7, v{vLane}
        v_lshl_add_u32 v{t0}, v{t1}, 4, v{t0}
        s_lshl_b32 s{sT2}, s{sT2}, 7
        v_add_u32 v{t0}, s{sT2}, v{t0}
        s_cmp_ge_u32 s{sT1}, 54
        s_cbranch_scc1 K1_RPO{ty}
        s_mov_b32 s44, s52
        s_mov_b32 s45, s53
        s_mov_b32 s46, {1728*1280}
        s_mul_i32 s55, s{sT1}, {32*1280}
        s_mov_b32 s56, {8*1280}
        s_mov_b32 s57, 0
        s_branch K1_RPD{ty}
        K1_RPO{ty}:
        s_mov_b32 s44, s34
        s_mov_b32 s45, s35
        s_mov_b32 s46, {640*1280}
        s_sub_u32 s{sT1}, s{sT1}, 54
        s_cmp_ge_u32 s{sT1}, 16
        s_cbranch_scc1 K1_RPX{ty}
        s_mul_i32 s55, s{sT1}, {40*1280}
        s_mov_b32 s56, {8*1280}
        s_mov_b32 s57, {4*1280}
        s_branch K1_RPD{ty}
        K1_RPX{ty}:
        s_sub_u32 s{sT1}, s{sT1}, 16
        s_mul_i32 s55, s{sT1}, {160*1280}
        s_add_u32 s55, s55, {16*1280}
        s_mov_b32 s56, {40*1280}
        s_mov_b32 s57, 0
        K1_RPD{ty}:
        s_mov_b32 s47, 0x20000
        s_lshl_b32 s{sT0}, s{sW}, 12
        s_add_u32 m0, s{sT0}, {MISC}
        """)
        for jj in range(4):
            p(f"s_nop 0\nbuffer_load_dwordx4 v{t0}, s[44:47], s55 offen lds")
            if jj < 3:
                p(f"s_add_u32 s55, s55, s56")
                if jj == 1:
                    p(f"s_add_u32 s55, s55, s57")
                p("s_add_u32 m0, m0, 1024")
        p.label(f"K1_NORP{ty}")
        p(f"""
        s_cmp_ge_u32 s2, 128
        s_cbranch_scc1 K1_NOG{ty}
        v_lshrrev_b32 v{t0}, 4, v0
        s_lshl_b32 s{sT0}, s2, 4
        v_add_u32 v{t0}, s{sT0}, v{t0}            ; row
        v_lshlrev_b32 v{vT+8}, 3, v{t0}
        v_add_u32 v{vT+8}, {WS_G}, v{vT+8}        ; destination
        v_mul_u32_u24 v{t0}, 1280, v{t0}
        v_and_b32 v{t1}, 15, v0
        v_mul_u32_u24 v{t1}, 80, v{t1}
        v_add_u32 v{t0}, v{t0}, v{t1}
        """)
        for i in range(5):
            p(f"buffer_load_dwordx4 v[{ACC+4*i}:{ACC+4*i+3}], v{t0}, s[4:7], 0 offen offset:{16*i}")
        for i in range(5):
            p(f"buffer_load_dwordx4 v[{ACC+20+4*i}:{ACC+20+4*i+3}], v{t1}, s[16:19], 0 offen offset:{16*i}")
        p.label(f"K1_NOG{ty}")
        if ty == 1:
            p(f"""
            v_lshrrev_b32 v{t0}, 4, v{vLane}
            v_lshlrev_b32 v{t0}, 3, v{t0}
            s_lshl_b32 s{sT0}, s{sC}, 9
            s_lshl_b32 s{sT1}, s{sWN}, 8
            s_add_u32 s{sT0}, s{sT0}, s{sT1}
            v_add_u32 v{t0}, s{sT0}, v{t0}
            """)
            for nt in range(8):
                p(f"buffer_load_dwordx2 v[{96+2*nt}:{97+2*nt}], v{t0}, s[40:43], 0 offen offset:{32*nt}")

    def misc_process(ty):
        p(f"""
        s_lshl_b32 s{sT0}, s2, 2
        s_add_u32 s{sT0}, s{sT0}, s{sW}
        s_cmp_ge_u32 s{sT0}, 740
        s_cbranch_scc1 K1_NORP2{ty}
        v_lshrrev_b32 v{t0}, 2, v{vLane}
        v_lshlrev_b32 v{t0}, 7, v{t0}
        v_and_b32 v{t1}, 3, v{vLane}
        v_lshl_add_u32 v{t0}, v{t1}, 3, v{t0}
        s_lshl_b32 s{sT0}, s{sW}, 12
        s_add_u32 s{sT0}, s{sT0}, {MISC}
        v_add_u32 v{t0}, s{sT0}, v{t0}
        v_lshlrev_b32 v{t1}, 4, v{vLane}
        """)
        R = vT + 12
        for tt in range(4):
            for h in range(2):
                p(f"ds_read_b64_tr_b16 v[{R+4*tt+2*h}:{R+4*tt+2*h+1}], v{t0} offset:{h*2048 + tt*32}")
        p("s_waitcnt lgkmcnt(0)")
        for tt in range(4):
            p(f"buffer_store_dwordx4 v[{R+4*tt}:{R+4*tt+3}], v{t1}, s[12:15], s54 offen offset:{1024*tt} {stf}")
        p.label(f"K1_NORP2{ty}")
        z = vT + 10
        p(f"""
        s_cmp_ge_u32 s2, 128
        s_cbranch_scc1 K1_NOG2{ty}
        v_mov_b32 v{z}, 0
        """)
        for i in range(20):
            p(f"v_dot2_f32_bf16 v{z}, v{ACC+i}, v{ACC+20+i}, v{z}")
        for sh in (8, 4, 2, 1):
            p(f"s_nop 2\nv_add_f32_dpp v{z}, v{z}, v{z} row_ror:{sh} row_mask:0xf bank_mask:0xf")
        g = vT + 4
        p(f"""
        v_cvt_pk_bf16_f32 v{z}, v{z}, v{z}
        v_lshlrev_b32 v{z}, 16, v{z}
        v_mul_f32 v{z}, {hex(f2u(-1.4426950408889634))}, v{z}
        v_exp_f32 v{z}, v{z}
        s_nop 0
        v_add_f32 v{z}, 1.0, v{z}
        v_rcp_f32 v{z}, v{z}
        s_nop 0
        v_cvt_pk_bf16_f32 v{z}, v{z}, v{z}
        v_lshlrev_b32 v{g}, 16, v{z}
        v_sub_f32 v{z}, 1.0, v{g}
        v_cvt_pk_bf16_f32 v{z}, v{z}, v{z}
        v_lshlrev_b32 v{g+1}, 16, v{z}
        v_and_b32 v{z}, 15, v0
        v_cmp_eq_u32 vcc, 0, v{z}
        v_mov_b32 v{z}, 0x40000000
        v_cndmask_b32 v{vT+8}, v{z}, v{vT+8}, vcc
        buffer_store_dwordx2 v[{g}:{g+1}], v{vT+8}, s[12:15], 0 offen {stf}
        """)
        p.label(f"K1_NOG2{ty}")

    def x_reads(buf, kk):
        return [f"ds_read_b128 a[{FB[buf]+4*rt}:{FB[buf]+4*rt+3}], v{vXr[kk]} offset:{rt*2048}" for rt in range(4)]
    def w_reads(ty, buf, kk, nt):
        r = []
        for h in range(2):
            d = FB[buf] + 16 + 4 * nt + 2 * h
            if ty == 0:
                base = (32 * kk + 16 * h) * 480
                if nt < 6:
                    reg, off = vWr[0], base + (nt % 3) * 160 + (nt // 3) * 40
                else:
                    reg, off = vWr[nt - 5], base
            else:
                reg, off = vWr[nt % 4], (nt // 4) * 8192 + kk * 4096 + h * 2048
            r.append(f"ds_read_b64_tr_b16 a[{d}:{d+1}], v{reg} offset:{off}")
        return r
    def reads(ty, buf, kk):
        r = w_reads(ty, buf, kk, 0) + x_reads(buf, kk)
        for nt in range(1, 8):
            r += w_reads(ty, buf, kk, nt)
        return r
    def mfmas(ty, buf):
        r = []
        for nt in range(8):
            for rt in range(4):
                x = f"a[{FB[buf]+4*rt}:{FB[buf]+4*rt+3}]"
                w = f"a[{FB[buf]+16+4*nt}:{FB[buf]+16+4*nt+3}]"
                a, b = (x, w) if (ty == 0 and nt in (2, 5, 7)) else (w, x)
                r.append(f"v_mfma_f32_16x16x32_bf16 v[{acc(rt,nt)}:{acc(rt,nt)+3}], {a}, {b}, v[{acc(rt,nt)}:{acc(rt,nt)+3}]")
        return r
    nWr = lambda ty: 3 if ty == 0 else 4
    def addr_update(ty):
        r = [f"v_add_u32 v{vXr[0]}, s{sDelta}, v{vXr[0]}", f"v_add_u32 v{vXr[1]}, s{sDelta}, v{vXr[1]}"]
        r += [f"v_add_u32 v{vWr[i]}, s{sDelta}, v{vWr[i]}" for i in range(nWr(ty))]
        return r
    def stage(ty, dma, vm, last):
        if not last:
            p(f"""
            s_add_u32 s{sT1}, s{sSlot}, {SLOT}
            s_cmp_eq_u32 s{sT1}, {3*SLOT}
            s_cselect_b32 s{sT1}, 0, s{sT1}
            s_sub_u32 s{sDelta}, s{sT1}, s{sSlot}
            """)
        fill = reads(ty, 1, 1)
        if not last:
            fill = fill + [addr_update(ty)]
        p.extend(interleave(mfmas(ty, 0), fill))
        p("s_waitcnt lgkmcnt(0)")
        if not last:
            p(f"s_waitcnt vmcnt({vm})")
            p("s_barrier")
            fill = reads(ty, 0, 0)
            if dma:
                fill = fill + dma_list(ty, f"s{sSlot}")
            p.extend(interleave(mfmas(ty, 1), fill))
            p(f"s_add_u32 s{sSlot}, s{sSlot}, s{sDelta}")
            p("s_waitcnt lgkmcnt(0)")
        else:
            p.extend(mfmas(ty, 1))

    def body(ty):
        L = "A" if ty == 0 else "H"
        issue_stage(ty, 0)
        misc_loads(ty)
        issue_stage(ty, 1)
        issue_stage(ty, 2)
        p(f"s_mov_b32 s{sSlot}, 0")
        if ty == 0:
            attn_precompute()
        st.mark("issued") if ty == 0 else (p(f"s_memtime s[{st.sbase+6}:{st.sbase+7}]") if st.on else None)
        p("s_waitcnt vmcnt(24)")
        st.mark("landed") if ty == 0 else (p(f"s_memtime s[{st.sbase+8}:{st.sbase+9}]") if st.on else None)
        misc_process(ty)
        if ty == 0:
            for i in range(128):
                p(f"v_mov_b32 v{ACC+i}, 0")
        else:
            for nt in range(8):
                for hlf in range(2):
                    src = 96 + 2 * nt + hlf
                    p(f"v_lshlrev_b32 v{vBias+4*nt+2*hlf}, 16, v{src}")
                    p(f"v_and_b32 v{vBias+4*nt+2*hlf+1}, 0xffff0000, v{src}")
            for rt in range(4):
                for nt in range(8):
                    for r in range(4):
                        p(f"v_mov_b32 v{acc(rt,nt)+r}, v{vBias+4*nt+r}")
        p("s_barrier")
        p.extend(reads(ty, 0, 0))
        p(f"s_mov_b32 s{sCnt}, 7")
        p("s_waitcnt lgkmcnt(0)")
        st.mark("loop") if ty == 0 else (p(f"s_memtime s[{st.sbase+10}:{st.sbase+11}]") if st.on else None)
        p(".p2align 3")
        p.label(f"K1_LOOP{L}")
        stage(ty, True, 12, False)
        p(f"""
        s_sub_u32 s{sCnt}, s{sCnt}, 1
        s_cmp_lg_u32 s{sCnt}, 0
        s_cbranch_scc1 K1_LOOP{L}
        """)
        stage(ty, False, 12, False)
        stage(ty, False, 0, False)
        stage(ty, False, None, True)
        st.mark("mainend") if ty == 0 else (p(f"s_memtime s[{st.sbase+12}:{st.sbase+13}]") if st.on else None)

    def attn_precompute():
        e0, e1, e2, e3 = vE, vE + 1, vE + 2, vE + 3
        p(f"""
        v_and_b32 v{e0}, 15, v{vLane}             ; i
        v_lshrrev_b32 v{e1}, 4, v{vLane}          ; q
        v_lshlrev_b32 v{e2}, 2, v{e1}
        v_sub_u32 v{e2}, v{e0}, v{e2}             ; i - 4q
        v_mov_b32 v{e3}, {hex(NEG)}
        """)
        for r in range(4):
            p(f"""
            v_subrev_u32 v{vE+4}, {r}, v{e2}          ; d = i - j
            v_and_b32 v{vE+5}, 0x80000001, v{vE+4}
            v_cmp_eq_u32 vcc, 0, v{vE+5}
            v_cndmask_b32 v{BC+r}, v{e3}, 0, vcc
            v_sub_u32 v{vE+4}, -2, v{vE+4}            ; j - i - 2
            v_and_b32 v{vE+5}, 0x80000001, v{vE+4}
            v_cmp_eq_u32 vcc, 0, v{vE+5}
            v_cndmask_b32 v{BP+r}, v{e3}, 0, vcc
            """.replace(f"v_cndmask_b32 v{BC+r}, v{e3}, 0, vcc", f"v_cndmask_b32_e64 v{BC+r}, v{e3}, 0, vcc").replace(f"v_cndmask_b32 v{BP+r}, v{e3}, 0, vcc", f"v_cndmask_b32_e64 v{BP+r}, v{e3}, 0, vcc"))
        p(f"""
        s_cmp_eq_u32 s{sWM}, 0
        s_cselect_b64 vcc, -1, 0
        """)
        for r in range(4):
            p(f"v_cndmask_b32 v{BP0+r}, v{BP+r}, v{e3}, vcc")
        p(f"""
        s_lshl_b32 s{sT0}, s{sWM}, 6
        s_add_u32 s{sT0}, s{sT0}, s{sR0}
        s_cmp_eq_u32 s{sB}, 0
        s_cselect_b32 s{sT1}, 0, 14
        s_add_u32 s{sT1}, s{sT1}, s{sR0}
        s_lshl_b32 s{sT2}, s{sWN}, 9              ; 2 wn * 256
        s_and_b32 s{sT3}, s{sC}, 1
        s_lshl_b32 s{sT3}, s{sT3}, 3
        s_add_u32 s{sT2}, s{sT2}, s{sT3}
        """)
        for t in range(4):
            row, a, b_ = vE + 3, vE + 4, vE + 5
            p(f"""
            v_add_u32 v{row}, s{sT0}, v{e0}
            v_add_u32 v{row}, {16*t}, v{row}          ; global row
            v_lshrrev_b32 v{a}, 6, v{row}
            v_mul_u32_u24 v{a}, {NKS*4096//64}, v{a}
            v_lshlrev_b32 v{a}, 6, v{a}               ; mb*74*4096
            v_bfe_u32 v{b_}, v{row}, 4, 2
            v_lshl_add_u32 v{a}, v{b_}, 10, v{a}
            v_and_b32 v{b_}, 15, v{row}
            v_lshl_add_u32 v{a}, v{b_}, 4, v{a}       ; + i'*16
            v_lshl_add_u32 v{a}, v{e1}, 8, v{a}       ; + q*256
            v_cmp_le_u32 vcc, s{sT1}, v{row}
            v_cmp_gt_u32 s[56:57], {hex(2048)}, v{row}
            s_and_b64 vcc, vcc, s[56:57]
            v_mov_b32 v{b_}, 0x40000000
            v_cndmask_b32 v{vAddr(t)}, v{b_}, v{a}, vcc
            v_cmp_gt_u32 s[56:57], 32, v{vLane}
            s_and_b64 vcc, vcc, s[56:57]
            v_add_u32 v{a}, s{sT2}, v{a}
            v_cndmask_b32 v{vAddrX(t)}, v{b_}, v{a}, vcc
            """.replace("v_cmp_gt_u32 s[56:57], 0x800,", f"s_movk_i32 s{sSt0}, 0x800\n v_cmp_gt_u32 s[56:57], s{sSt0},"))
        p(f"""
        s_lshl_b32 s{sT0}, s{sWN}, 12
        s_add_u32 s{sT0}, s{sT0}, {MISC}
        v_lshlrev_b32 v{vHx}, 4, v{vLane}
        v_add_u32 v{vHx}, s{sT0}, v{vHx}
        v_lshlrev_b32 v{vHx+1}, 3, v{vLane}
        v_add_u32 v{vHx+1}, s{sT0}, v{vHx+1}
        v_mov_b32 v{vOnes}, 0x3f803f80
        """)

    def attn_epilogue():
        cvt = lambda d, a, b: f"v_cvt_pk_bf16_f32 v{d}, v{a}, v{b}"
        mq0, mq1, mhi = "s[64:65]", "s[66:67]", "s[68:69]"
        if st.on:
            mq0, mq1, mhi = "s[40:41]", "s[42:43]", "s[44:45]"
        a0 = int(mq0[2:].split(":")[0]); a1 = int(mq1[2:].split(":")[0]); a2 = int(mhi[2:].split(":")[0])
        C = 0.22360679774997896 * 1.4426950408889634
        p(f"""
        s_mov_b32 s{a0}, 0xffff
        s_mov_b32 s{a0+1}, 0
        s_mov_b32 s{a1}, 0xffff0000
        s_mov_b32 s{a1+1}, 0
        s_mov_b32 s{a2}, 0xff00ff00
        s_mov_b32 s{a2+1}, 0xff00ff00
        s_mov_b32 s{sCC}, {hex(f2u(C))}
        s_mov_b32 s{sCC+1}, {hex(f2u(C))}
        s_lshl_b32 s{sSt0}, s{sC}, 1
        s_add_u32 s{sSt0}, s{sSt0}, s{sWN}
        s_add_u32 s{sSt0}, s{sSt0}, 54
        s_lshl_b32 s{sSt0}, s{sSt0}, 12
        s_lshr_b32 s{sSt1}, s{sC}, 1
        s_add_u32 s{sSt1}, s{sSt1}, 70
        s_lshl_b32 s{sSt1}, s{sSt1}, 12
        s_nop 7
        """)
        def pack(t):
            T = vE
            r = []
            r += [cvt(KOP(t), acc(t,1), acc(t,1)+1), cvt(KOP(t)+1, acc(t,1)+2, acc(t,1)+3)]
            r += [cvt(KOP(t)+4, acc(t,4), acc(t,4)+1), cvt(KOP(t)+5, acc(t,4)+2, acc(t,4)+3)]
            r += [cvt(T, acc(t,6), acc(t,6)+1), cvt(T+1, acc(t,6)+2, acc(t,6)+3)]
            r += [cvt(VA(t), acc(t,2), acc(t,2)+1), cvt(VA(t)+1, acc(t,2)+2, acc(t,2)+3)]
            r += [f"v_mov_b32 v{KOP(t)+2}, v{T}", f"v_mov_b32 v{KOP(t)+3}, v{T+1}"]
            r += [f"v_cndmask_b32_e64 v{QOP(t)+2}, 0, v{T}, {mq0}", f"v_cndmask_b32_e64 v{QOP(t)+3}, 0, v{T+1}, {mq0}"]
            r += [f"v_cndmask_b32_e64 v{QOP(t)+4}, 0, v{T}, {mq1}", f"v_cndmask_b32_e64 v{QOP(t)+5}, 0, v{T+1}, {mq1}"]
            r += [f"v_permlane32_swap_b32 v{T}, v{KOP(t)+2}", f"v_permlane32_swap_b32 v{T+1}, v{KOP(t)+3}"]
            r += [cvt(VB(t), acc(t,5), acc(t,5)+1), cvt(VB(t)+1, acc(t,5)+2, acc(t,5)+3)]
            r += [cvt(VX(t), acc(t,7), acc(t,7)+1), cvt(VX(t)+1, acc(t,7)+2, acc(t,7)+3)]
            r += [cvt(QOP(t), acc(t,0), acc(t,0)+1), cvt(QOP(t)+1, acc(t,0)+2, acc(t,0)+3)]
            r += [cvt(QOP(t)+6, acc(t,3), acc(t,3)+1), cvt(QOP(t)+7, acc(t,3)+2, acc(t,3)+3)]
            r += [f"v_cndmask_b32_e64 v{VX(t)}, v{VX(t)}, v{vOnes}, {mhi}", f"v_cndmask_b32_e64 v{VX(t)+1}, v{VX(t)+1}, v{vOnes}, {mhi}"]
            return r
        p.extend(pack(3))
        p(f"""
        s_cmp_eq_u32 s{sWM}, 0
        s_cbranch_scc0 K1_NOHW
        ds_write_b128 v{vHx}, v[{KOP(3)}:{KOP(3)+3}]
        ds_write_b64 v{vHx+1}, v[{KOP(3)+4}:{KOP(3)+5}] offset:1024
        ds_write_b64 v{vHx+1}, v[{VA(3)}:{VA(3)+1}] offset:1536
        ds_write_b64 v{vHx+1}, v[{VB(3)}:{VB(3)+1}] offset:2048
        ds_write_b64 v{vHx+1}, v[{VX(3)}:{VX(3)+1}] offset:2560
        K1_NOHW:
        """)
        for t in (0, 1, 2):
            p.extend(pack(t))
        S = lambda x: ACC + 8 * x
        Pp = lambda x: ACC + 32 + 4 * x
        O16 = lambda x: ACC + 48 + 4 * x
        OX = lambda x: ACC + 64 + 4 * x
        MX = ACC + 80
        RI = lambda x: ACC + 88 + 2 * x
        NM = lambda x: ACC + 96 + 2 * x
        OUT = lambda k: ACC + 104 + 4 * k
        XO = lambda k: ACC + 112 + 4 * k
        def group(tiles):
            blocks = [(t, h) for t in tiles for h in range(2)]
            for x, (t, h) in enumerate(blocks):
                kp = KOP(t - 1) + 2 * h; kc = KOP(t) + 2 * h; q = QOP(t) + 4 * h
                bp = BP0 if t == 0 else BP
                p(f"v_mfma_f32_16x16x32_bf16 v[{S(x)}:{S(x)+3}], v[{kp}:{kp+3}], v[{q}:{q+3}], v[{bp}:{bp+3}]")
                p(f"v_mfma_f32_16x16x32_bf16 v[{S(x)+4}:{S(x)+7}], v[{kc}:{kc+3}], v[{q}:{q+3}], v[{BC}:{BC+3}]")
            p("s_nop 3")
            for x in range(4):
                p(f"v_max3_f32 v{MX+x}, v{S(x)}, v{S(x)+1}, v{S(x)+2}")
            for x in range(4):
                p(f"v_max3_f32 v{MX+x}, v{MX+x}, v{S(x)+3}, v{S(x)+4}")
            for x in range(4):
                p(f"v_max3_f32 v{MX+x}, v{MX+x}, v{S(x)+5}, v{S(x)+6}")
            for x in range(4):
                p(f"v_max_f32 v{MX+x}, v{MX+x}, v{S(x)+7}")
            p(f"""
            v_permlane32_swap_b32 v{MX}, v{MX+1}
            v_permlane32_swap_b32 v{MX+2}, v{MX+3}
            v_max_f32 v{MX}, v{MX}, v{MX+1}
            v_max_f32 v{MX+2}, v{MX+2}, v{MX+3}
            v_permlane16_swap_b32 v{MX}, v{MX+2}
            v_max_f32 v{MX}, v{MX}, v{MX+2}           ; rows: A C B D
            v_mul_f32 v{NM(0)}, {hex(f2u(-C))}, v{MX}
            v_mov_b32 v{NM(1)}, v{NM(0)}
            v_permlane32_swap_b32 v{NM(0)}, v{NM(1)}
            v_mov_b32 v{NM(2)}, v{NM(0)}
            v_mov_b32 v{NM(3)}, v{NM(1)}
            v_permlane16_swap_b32 v{NM(0)}, v{NM(2)}
            v_permlane16_swap_b32 v{NM(1)}, v{NM(3)}
            """)
            for x in range(4):
                for k in range(4):
                    s_ = S(x) + 2 * k
                    p(f"v_pk_fma_f32 v[{s_}:{s_+1}], v[{s_}:{s_+1}], s[{sCC}:{sCC+1}], v[{NM(x)}:{NM(x)+1}] op_sel_hi:[1,1,0]")
            for x in range(4):
                for k in range(8):
                    p(f"v_exp_f32 v{S(x)+k}, v{S(x)+k}")
                if x > 0:
                    for k in range(4):
                        p(cvt(Pp(x-1) + k, S(x-1) + 2 * k, S(x-1) + 2 * k + 1))
            for k in range(4):
                p(cvt(Pp(3) + k, S(3) + 2 * k, S(3) + 2 * k + 1))
            for x, (t, h) in enumerate(blocks):
                v = (VA(t - 1) if h == 0 else VB(t - 1))
                p(f"v_mfma_f32_16x16x32_bf16 v[{OX(x)}:{OX(x)+3}], v[{VX(t-1)}:{VX(t-1)+3}], v[{Pp(x)}:{Pp(x)+3}], 0")
                p(f"v_mfma_f32_16x16x32_bf16 v[{O16(x)}:{O16(x)+3}], v[{v}:{v+3}], v[{Pp(x)}:{Pp(x)+3}], 0")
            for x in range(4):
                p(f"v_mov_b32 v{RI(x)}, v{OX(x)}")
            for x in range(4):
                p(f"v_permlane32_swap_b32 v{OX(x)+1}, v{RI(x)}")
            for x in range(4):
                p(f"v_rcp_f32 v{RI(x)}, v{RI(x)}")
            for x, (t, h) in enumerate(blocks):
                k = x // 2
                for hl in range(2):
                    o = O16(x) + 2 * hl
                    p(f"v_pk_mul_f32 v[{o}:{o+1}], v[{o}:{o+1}], v[{RI(x)}:{RI(x)+1}] op_sel_hi:[1,0]")
                for hl in range(2):
                    o = OX(x) + 2 * hl
                    p(f"v_pk_mul_f32 v[{o}:{o+1}], v[{o}:{o+1}], v[{RI(x)}:{RI(x)+1}] op_sel_hi:[1,0]")
                p(cvt(OUT(k) + 2 * h, O16(x), O16(x) + 1)); p(cvt(OUT(k) + 2 * h + 1, O16(x) + 2, O16(x) + 3))
                p(cvt(XO(k) + 2 * h, OX(x), OX(x) + 1)); p(cvt(XO(k) + 2 * h + 1, OX(x) + 2, OX(x) + 3))
            for k, t in enumerate(tiles):
                p(f"v_cndmask_b32_e64 v{XO(k)}, v{XO(k)+2}, v{XO(k)}, {mq0}")
                p(f"v_cndmask_b32_e64 v{XO(k)+1}, v{XO(k)+3}, v{XO(k)+1}, {mq0}")
                p(f"buffer_store_dwordx4 v[{OUT(k)}:{OUT(k)+3}], v{vAddr(t)}, s[12:15], s{sSt0} offen {stf}")
                p(f"buffer_store_dwordx2 v[{XO(k)}:{XO(k)+1}], v{vAddrX(t)}, s[12:15], s{sSt1} offen {stf}")
        p("s_waitcnt lgkmcnt(0)")
        p("s_barrier")
        p(f"""
        s_cmp_eq_u32 s{sWM}, 0
        s_cbranch_scc1 K1_HZ
        ds_read_b128 v[{KOP(-1)}:{KOP(-1)+3}], v{vHx}
        ds_read_b64 v[{KOP(-1)+4}:{KOP(-1)+5}], v{vHx+1} offset:1024
        ds_read_b64 v[{VA(-1)}:{VA(-1)+1}], v{vHx+1} offset:1536
        ds_read_b64 v[{VB(-1)}:{VB(-1)+1}], v{vHx+1} offset:2048
        ds_read_b64 v[{VX(-1)}:{VX(-1)+1}], v{vHx+1} offset:2560
        s_branch K1_HD
        K1_HZ:
        """)
        for r in list(range(KOP(-1), KOP(-1) + 6)) + [VA(-1), VA(-1)+1, VB(-1), VB(-1)+1, VX(-1), VX(-1)+1]:
            p(f"v_mov_b32 v{r}, 0")
        p.label("K1_HD")
        group((1, 2))
        p("s_waitcnt lgkmcnt(0)")
        group((3, 0))

    def gelu_epilogue():
        A_ = -2.0 * 0.7978845608028654 * 1.4426950408889634
        B_ = A_ * 0.044715
        p(f"""
        s_mov_b32 s{sCC}, {hex(f2u(B_))}
        s_mov_b32 s{sCC+1}, {hex(f2u(B_))}
        v_mov_b32 v2, {hex(f2u(A_))}
        v_mov_b32 v3, {hex(f2u(A_))}
        v_lshlrev_b32 v4, 4, v{vLane}
        s_lshl_b32 s{sT0}, s{sB}, 1
        s_add_u32 s{sT0}, s{sT0}, s{sWM}          ; mb
        s_mul_i32 s{sT0}, s{sT0}, {NKS}
        s_lshl_b32 s{sT1}, s{sC}, 3
        s_add_u32 s{sT0}, s{sT0}, s{sT1}
        s_lshl_b32 s{sT1}, s{sWN}, 2
        s_add_u32 s{sT0}, s{sT0}, s{sT1}
        s_lshl_b32 s{sSt0}, s{sT0}, 12
        s_nop 7
        """)
        for u in range(4):
            if u == 2:
                p(f"""
                s_cmp_eq_u32 s{sC}, 6
                s_cselect_b32 s{sT0}, s{sWN}, 0
                s_cmp_eq_u32 s{sT0}, 1
                s_cbranch_scc1 K1_HDONE
                """)
            for rt in range(4):
                X = [acc(rt, 2 * u) , acc(rt, 2 * u) + 2, acc(rt, 2 * u + 1), acc(rt, 2 * u + 1) + 2]
                T = [8 + 8 * ((u * 4 + rt) % 2) + 2 * i for i in range(4)]
                D = 24 + 4 * ((u * 4 + rt) % 4)
                for i in range(4): p(f"v_pk_mul_f32 v[{T[i]}:{T[i]+1}], v[{X[i]}:{X[i]+1}], v[{X[i]}:{X[i]+1}]")
                for i in range(4): p(f"v_pk_fma_f32 v[{T[i]}:{T[i]+1}], v[{T[i]}:{T[i]+1}], s[{sCC}:{sCC+1}], v[2:3]")
                for i in range(4): p(f"v_pk_mul_f32 v[{T[i]}:{T[i]+1}], v[{T[i]}:{T[i]+1}], v[{X[i]}:{X[i]+1}]")
                for i in range(4):
                    p(f"v_exp_f32 v{T[i]}, v{T[i]}"); p(f"v_exp_f32 v{T[i]+1}, v{T[i]+1}")
                for i in range(4): p(f"v_pk_add_f32 v[{T[i]}:{T[i]+1}], v[{T[i]}:{T[i]+1}], 1.0 op_sel_hi:[1,0]")
                for i in range(4):
                    p(f"v_rcp_f32 v{T[i]}, v{T[i]}"); p(f"v_rcp_f32 v{T[i]+1}, v{T[i]+1}")
                for i in range(4): p(f"v_pk_mul_f32 v[{T[i]}:{T[i]+1}], v[{T[i]}:{T[i]+1}], v[{X[i]}:{X[i]+1}]")
                for i in range(4): p(f"v_cvt_pk_bf16_f32 v{D+i}, v{T[i]}, v{T[i]+1}")
                off = f" offset:{1024*rt}" if rt else ""
                p(f"buffer_store_dwordx4 v[{D}:{D+3}], v4, s[12:15], s{sSt0} offen{off} {stf}")
            p(f"s_add_u32 s{sSt0}, s{sSt0}, 4096")
        p.label("K1_HDONE")

    p(f"""
    s_cmp_eq_u32 s{sTY}, 1
    s_cbranch_scc1 K1_HBODY
    """)
    for i in range(nWr(0)):
        pass
    body(0)
    attn_epilogue()
    p("s_branch K1_FIN")
    p.label("K1_HBODY")
    body(1)
    gelu_epilogue()
    p.label("K1_FIN")
    if st.on:
        st.mark("stored")
        p("s_waitcnt vmcnt(0)")
        st.mark("drained")
        p(f"s_mov_b32 s14, {WS_STAMP + 0x80000}")
        st.dump(12, sW, WS_STAMP + 0x40000, 8)
    p.label("K1_END")
    p("s_endpgm")
    p.label("K1_CODE_END")
    p.fix_hazards()
    desc = f""".amdhsa_kernel {name}
  .amdhsa_next_free_vgpr {256 + 96}
  .amdhsa_next_free_sgpr 102
  .amdhsa_accum_offset 256
  .amdhsa_group_segment_fixed_size 0
  .amdhsa_kernarg_size 96
  .amdhsa_user_sgpr_count 2
  .amdhsa_user_sgpr_kernarg_segment_ptr 1
  .amdhsa_system_sgpr_workgroup_id_x 1
.end_amdhsa_kernel
"""
    return p.text(), desc, LDS_BYTES
```

```python
from asmlib import *

NKS = 74
WS_A = 0x000000
WS_W = 0xA00000
WS_G = 0xD00000
WS_SIZE = 0xD10000
WS_STAMP = 0xE00000

def k2(cfg):
    P = cfg.get("k2_P", 5)
    RS = 15360
    p = Prog()
    name = cfg["k2_name"]
    ACC = 0
    M = 80
    vA = [M + i for i in range(4)]
    vB = [M + 4, M + 5]
    vG = M + 6
    vBias = M + 8
    vBraw = M + 28
    vT = M + 38
    vOut = M + 46
    vRd = [M + 47 + i for i in range(3)]
    vWr = M + 50
    vPF = M + 51
    vLane = M + 52
    vWt = M + 54
    vPk = M + 58
    NV = M + 68
    acc = lambda rt, ct: ACC + (rt * 5 + ct) * 4
    ring = lambda s: (s % P) * 36
    sW, sMB, sCB, sAo, sBo, sReg, sT0, sT1, sT2 = 20, 21, 22, 23, 24, 25, 26, 27, 28
    st = Stamps(p, cfg.get("stamp", False))

    p(f".p2align 8\n.globl {name}\n.type {name},@function\n{name}:")
    p(f"""
    s_cmp_ge_u32 s2, 256
    s_cbranch_scc1 K2_END
    """)
    st.start()
    st.mark("entry")
    p(f"""
    s_load_dwordx2 s[16:17], s[0:1], 56
    s_load_dwordx2 s[12:13], s[0:1], 72
    s_load_dwordx2 s[4:5], s[0:1], 88
    v_and_b32 v{vLane}, 63, v0
    """)
    if cfg.get("codepf", True):
        p(f"""
        s_getpc_b64 s[30:31]
        K2_PC:
        v_lshlrev_b32 v{vT}, 7, v{vLane}
        v_min_u32 v{vT+1}, K2_CODE_END-K2_PC-64, v{vT}
        global_load_dword v{vPF}, v{vT+1}, s[30:31]
        v_add_u32 v{vT}, 0x2000, v{vT}
        v_min_u32 v{vT+1}, K2_CODE_END-K2_PC-64, v{vT}
        global_load_dword v{vPF}, v{vT+1}, s[30:31]
        """)
    p(f"""
    v_lshrrev_b32 v{vT}, 6, v0
    v_lshlrev_b32 v{vT+7}, 4, v{vLane}          ; lane*16
    v_readfirstlane_b32 s{sW}, v{vT}
    s_and_b32 s{sT0}, s2, 7
    s_lshr_b32 s{sT1}, s2, 3
    s_lshr_b32 s{sMB}, s{sT0}, 1
    s_lshl_b32 s{sMB}, s{sMB}, 3
    s_and_b32 s{sT2}, s{sT1}, 7
    s_add_u32 s{sMB}, s{sMB}, s{sT2}          ; mb = 8*(x/2) + j%8
    s_and_b32 s{sCB}, s{sT0}, 1
    s_lshl_b32 s{sCB}, s{sCB}, 2
    s_lshr_b32 s{sT2}, s{sT1}, 3
    s_add_u32 s{sCB}, s{sCB}, s{sT2}          ; cb = 4*(x%2) + j/8
    s_mul_i32 s{sReg}, s{sW}, {RS}
    s_mul_i32 s{sT0}, s{sW}, 18
    s_mul_i32 s{sAo}, s{sMB}, {NKS}
    s_add_u32 s{sAo}, s{sAo}, s{sT0}
    s_lshl_b32 s{sAo}, s{sAo}, 12
    s_mul_i32 s{sBo}, s{sT0}, 40960
    s_mul_i32 s{sT1}, s{sCB}, 5120
    s_add_u32 s{sBo}, s{sBo}, s{sT1}
    s_add_u32 s{sBo}, s{sBo}, {WS_W}
    s_lshr_b32 s{sT1}, s2, 3
    s_and_b32 s{sT2}, s{sT1}, 7
    s_mul_i32 s{sT2}, s{sT2}, {cfg.get("rot_b", 0)}
    s_lshr_b32 s{sT1}, s{sT1}, 3
    s_mul_i32 s{sT1}, s{sT1}, {cfg.get("rot_a", 0)}
    s_add_u32 s{sT1}, s{sT1}, s{sT2}          ; delta
    s_cmp_eq_u32 s{sW}, 3
    s_cselect_b32 s36, 20, 18
    K2_MODL:
    s_cmp_ge_u32 s{sT1}, s36
    s_cbranch_scc0 K2_MODD
    s_sub_u32 s{sT1}, s{sT1}, s36
    s_branch K2_MODL
    K2_MODD:
    s_lshl_b32 s{sT2}, s36, 12
    s_add_u32 s37, s{sAo}, s{sT2}
    s_mov_b32 s38, s{sAo}
    s_mov_b32 s39, s{sBo}
    s_lshl_b32 s{sT2}, s{sT1}, 12
    s_add_u32 s{sAo}, s{sAo}, s{sT2}
    s_mul_i32 s{sT2}, s{sT1}, 40960
    s_add_u32 s{sBo}, s{sBo}, s{sT2}
    v_mov_b32 v{vB[0]}, v{vT+7}
    v_add_u32 v{vB[1]}, 4096, v{vT+7}
    """)
    for rt in range(4):
        p(f"""
        s_add_u32 s{sT0}, s{sW}, {rt}
        s_and_b32 s{sT0}, s{sT0}, 3
        s_lshl_b32 s{sT0}, s{sT0}, 10
        v_add_u32 v{vA[rt]}, s{sT0}, v{vT+7}
        """)
    p(f"""
    s_waitcnt lgkmcnt(0)
    s_mov_b32 s6, {WS_SIZE}
    s_mov_b32 s7, 0x20000
    """)
    def a_load(s, rt):
        if cfg.get("x_noA"): return "s_nop 0"
        b = ring(s) + rt * 4
        return f"buffer_load_dwordx4 a[{b}:{b+3}], v{vA[rt]}, s[4:7], s{sAo} offen"
    def b_load(s, ct):
        if cfg.get("x_noB"): return "s_nop 0"
        b = ring(s) + 16 + ct * 4
        off = f" offset:{1024*ct}" if 0 < ct < 4 else ""
        return f"buffer_load_dwordx4 a[{b}:{b+3}], v{vB[ct//4]}, s[4:7], s{sBo} offen{off}"
    NPS = (0 if cfg.get("x_noA") else 4) + (0 if cfg.get("x_noB") else 5)
    adv = [f"s_add_u32 s{sAo}, s{sAo}, 4096", f"s_add_u32 s{sBo}, s{sBo}, 40960"]
    if cfg.get("rot_a", 0) or cfg.get("rot_b", 0):
        adv += [f"s_cmp_eq_u32 s{sAo}, s37", f"s_cselect_b32 s{sAo}, s38, s{sAo}", f"s_cselect_b32 s{sBo}, s39, s{sBo}"]
    for s in range(P):
        for ct in range(5): p(b_load(s, ct))
        for rt in range(4): p(a_load(s, rt))
        p.extend(adv)
    p(f"""
    s_mov_b32 s14, {2048*1280}
    s_mov_b32 s15, 0x20000
    s_mov_b32 s18, 1280
    s_mov_b32 s19, 0x20000
    v_and_b32 v{vT+1}, 15, v{vLane}           ; i
    v_lshrrev_b32 v{vT+2}, 4, v{vLane}        ; q
    s_lshl_b32 s{sT0}, s{sMB}, 6
    s_lshl_b32 s{sT1}, s{sW}, 4
    s_add_u32 s{sT0}, s{sT0}, s{sT1}
    v_add_u32 v{vT+1}, s{sT0}, v{vT+1}        ; row
    v_mul_u32_u24 v{vOut}, 1280, v{vT+1}
    s_mul_i32 s{sT1}, s{sCB}, 160
    v_lshl_add_u32 v{vT+3}, v{vT+2}, 3, s{sT1} ; col*2
    v_add_u32 v{vOut}, v{vOut}, v{vT+3}
    v_lshlrev_b32 v{vT+1}, 3, v{vT+1}         ; row*8
    v_add_u32 v{vT+1}, {WS_G}, v{vT+1}
    buffer_load_dwordx2 v[{vG}:{vG+1}], v{vT+1}, s[4:7], 0 offen
    """)
    for ct in range(5):
        p(f"buffer_load_dwordx2 v[{vBraw+2*ct}:{vBraw+2*ct+1}], v{vT+3}, s[16:19], 0 offen offset:{32*ct}")
    NX = 6
    p(f"v_add_u32 v{vWr}, s{sReg}, v{vT+7}")
    for k in range(1, 4):
        p(f"""
        s_sub_u32 s{sT0}, s{sW}, {k}
        s_and_b32 s{sT0}, s{sT0}, 3
        s_mul_i32 s{sT0}, s{sT0}, {RS}
        s_add_u32 s{sT0}, s{sT0}, {(k-1)*5120}
        v_add_u32 v{vRd[k-1]}, s{sT0}, v{vT+7}
        """)
    for i in range(80):
        p(f"v_mov_b32 v{ACC+i}, 0")
    st.mark("issued")

    def stream(tag, n):
        p.label(f"K2_{tag}")
        for s in range(n):
            last_issued = min(n - 1, s + P - 1)
            cnt = NPS * (last_issued - s)
            if s < P:
                cnt += NX
            p(f"s_waitcnt vmcnt({cnt})")
            if s == 0 and st.on:
                if tag == "HSTREAM": st.mark("first")
                else: p(f"s_memtime s[{st.sbase+4+4}:{st.sbase+4+5}]")
            nxt = s + P
            seq = []
            for rt in range(4):
                for ct in range(5):
                    a = ring(s) + rt * 4
                    b = ring(s) + 16 + ct * 4
                    seq.append(f"v_mfma_f32_16x16x32_bf16 v[{acc(rt,ct)}:{acc(rt,ct)+3}], a[{b}:{b+3}], a[{a}:{a+3}], v[{acc(rt,ct)}:{acc(rt,ct)+3}]")
                    if nxt < n:
                        if ct == 4:
                            seq.append(a_load(nxt, rt))
                        if rt == 3:
                            pass
            if nxt < n:
                out = []
                for i, x in enumerate(seq):
                    out.append(x)
                seq = out
                res = []
                mi = 0
                for x in seq:
                    res.append(x)
                    if x.startswith("v_mfma"):
                        rt, ct = divmod(mi, 5)
                        if rt == 3:
                            res.append(b_load(nxt, ct))
                        mi += 1
                seq = res + adv
            p.extend(seq)
        p("s_branch K2_FIN")

    p(f"""
    s_cmp_eq_u32 s{sW}, 3
    s_cbranch_scc1 K2_OSTREAM
    """)
    stream("HSTREAM", 18)
    stream("OSTREAM", 20)

    p.label("K2_FIN")
    st.mark("loopend")
    p("s_nop 7")
    for rt in range(1, 4):
        for ct in range(5):
            p(f"ds_write_b128 v{vWr}, v[{acc(rt,ct)}:{acc(rt,ct)+3}] offset:{(rt-1)*5120 + ct*1024}")
    for ct in range(5):
        for hlf in range(2):
            src = vBraw + 2 * ct + hlf
            p(f"v_lshlrev_b32 v{vBias+4*ct+2*hlf}, 16, v{src}")
            p(f"v_and_b32 v{vBias+4*ct+2*hlf+1}, 0xffff0000, v{src}")
    p(f"""
    s_add_u32 s{sT0}, s{sW}, 1
    s_and_b32 s{sT0}, s{sT0}, 3
    """)
    for k in range(4):
        p(f"""
        s_cmp_eq_u32 s{sT0}, {k}
        s_cselect_b64 vcc, -1, 0
        v_cndmask_b32 v{vWt+k}, v{vG+1}, v{vG}, vcc
        """)
    for ct in range(5):
        for hlf in range(2):
            a = acc(0, ct) + 2 * hlf
            p(f"v_pk_mul_f32 v[{a}:{a+1}], v[{a}:{a+1}], v[{vWt}:{vWt+1}] op_sel_hi:[1,0]")
            b = vBias + 4 * ct + 2 * hlf
            p(f"v_pk_fma_f32 v[{a}:{a+1}], v[{b}:{b+1}], v[{vG}:{vG+1}], v[{a}:{a+1}] op_sel:[0,1,0] op_sel_hi:[1,1,1]")
    p("s_waitcnt lgkmcnt(0)")
    p("s_barrier")
    st.mark("barrier")
    RD = ACC + 20
    for k in range(3):
        for ct in range(5):
            d = RD + (k * 5 + ct) * 4
            p(f"ds_read_b128 v[{d}:{d+3}], v{vRd[k]} offset:{ct*1024}")
    for k in range(3):
        p(f"s_waitcnt lgkmcnt({10-5*k})")
        w = vWt + 1 + k
        for ct in range(5):
            for hlf in range(2):
                a = acc(0, ct) + 2 * hlf
                d = RD + (k * 5 + ct) * 4 + 2 * hlf
                if w % 2 == 0:
                    p(f"v_pk_fma_f32 v[{a}:{a+1}], v[{d}:{d+1}], v[{w}:{w+1}], v[{a}:{a+1}] op_sel_hi:[1,0,1]")
                else:
                    p(f"v_pk_fma_f32 v[{a}:{a+1}], v[{d}:{d+1}], v[{w-1}:{w}], v[{a}:{a+1}] op_sel:[0,1,0] op_sel_hi:[1,1,1]")
    for ct in range(5):
        a = acc(0, ct)
        t = vPk + 2 * ct
        p(f"v_cvt_pk_bf16_f32 v{t}, v{a}, v{a+1}")
        p(f"v_cvt_pk_bf16_f32 v{t+1}, v{a+2}, v{a+3}")
        p(f"buffer_store_dwordx2 v[{t}:{t+1}], v{vOut}, s[12:15], 0 offen offset:{32*ct}")
    if st.on:
        st.mark("stored")
        p("s_waitcnt vmcnt(0)")
        st.mark("drained")
        p(f"s_mov_b32 s6, {WS_STAMP + 0x40000}")
        st.dump(4, sW, WS_STAMP, vT)
    p.label("K2_END")
    p("s_endpgm")
    p.label("K2_CODE_END")
    n = p.fix_hazards()
    NVA = (NV + 3) // 4 * 4
    desc = f""".amdhsa_kernel {name}
  .amdhsa_next_free_vgpr {NVA + P*36}
  .amdhsa_next_free_sgpr 102
  .amdhsa_accum_offset {NVA}
  .amdhsa_group_segment_fixed_size 0
  .amdhsa_kernarg_size 96
  .amdhsa_user_sgpr_count 2
  .amdhsa_user_sgpr_kernarg_segment_ptr 1
  .amdhsa_system_sgpr_workgroup_id_x 1
.end_amdhsa_kernel
"""
    return p.text(), desc, 4 * RS
```

```python
import sys, importlib
sys.path.insert(0, "dev")
import gen_k2
NAME = "gated_mix__sliding_local_dilated__dense_activation_gelu__prompt"
HEADER = open("cdna_kernels/%s.s.ref" % NAME).read().split("; Override launch")[0]

def build(cfg, kernels=("k1", "k2")):
    cfg = dict(cfg)
    cfg.setdefault("k1_name", NAME + "_kernel")
    cfg.setdefault("k2_name", "gm_k2_kernel")
    launches, texts, descs = [], [], []
    if "k1" in kernels:
        import gen_k1
        t, d, lds = gen_k1.k1(cfg)
        launches.append(f"; @launch kernel={cfg['k1_name']} grid=(256,1,1) block=(256,1,1) lds={lds}")
        texts.append(t); descs.append(d)
    if "k2" in kernels:
        t, d, lds = gen_k2.k2(cfg)
        launches.append(f"; @launch kernel={cfg['k2_name']} grid=(256,1,1) block=(256,1,1) lds={lds}")
        texts.append(t); descs.append(d)
    s = HEADER + "\n".join(launches) + "\n"
    s += '.amdgcn_target "amdgcn-amd-amdhsa--gfx950"\n.text\n'
    s += "\n".join(texts)
    s += '.section .rodata,"a"\n'
    for d in descs:
        s += ".p2align 6\n" + d
    return s

if __name__ == "__main__":
    out = sys.argv[1]
    kernels = sys.argv[2].split(",") if len(sys.argv) > 2 else ("k1", "k2")
    cfg = {}
    for a in sys.argv[3:]:
        k, v = a.split("=")
        cfg[k] = eval(v)
    open(out, "w").write(build(cfg, kernels))
    print("wrote", out)
```
